```python
import torch

def _softmax(x, axis=-1):
    return torch.softmax(x, dim=axis)
def _gelu(x):
    return torch.nn.functional.gelu(x, approximate="tanh")
def _silu(x):
    return torch.nn.functional.silu(x)
def _sigmoid(x):
    return torch.sigmoid(x)
def _layernorm(x, axis=-1, eps=1e-5):
    m = x.mean(dim=axis, keepdim=True)
    v = x.var(dim=axis, keepdim=True, unbiased=False)
    return (x - m) / torch.sqrt(v + eps)
def _scatter_add(tgt, idx, src, axis=0):
    return tgt.clone().index_add_(axis, idx, src)
def _segment_sum(src, seg, n):
    out = torch.zeros((n,) + src.shape[1:], dtype=src.dtype)
    return out.index_add_(0, seg, src)
def _pad(x, pw):
    flat = tuple(v for pair in reversed(pw) for v in pair)
    return torch.nn.functional.pad(x, flat)

kernel_name = 'sequential_preLN__ssm_conv_s4d__glu_gated_geglu__prompt'

def setup_inputs():

    _w = (lambda a: (lambda t: t.to(torch.bfloat16) if t.is_floating_point() else t)(torch.as_tensor(a)))
    def _A_setup():
        Bsz, L, D, N = 1, 2048, 512, 128
        return {
            "u": _w((lambda *s: torch.randn(*s, dtype=torch.bfloat16) * 0.05)(Bsz, L, D)),
            "log_A_real": _w((lambda *s: torch.randn(*s, dtype=torch.bfloat16) * 6.4)(D, N) * 0.5),
            "A_imag": _w((lambda *s: torch.randn(*s, dtype=torch.bfloat16) * 0.05)(D, N) * 3.14),
            "C_real": _w((lambda *s: torch.randn(*s, dtype=torch.bfloat16) * 0.05)(D, N) / N ** 0.5),
            "C_imag": _w((lambda *s: torch.randn(*s, dtype=torch.bfloat16) * 0.05)(D, N) / N ** 0.5),
            "log_dt": _w((lambda *s: torch.randn(*s, dtype=torch.bfloat16) * 0.05)(D) * 0.5 - 4.0),
            "D_skip": _w((lambda *s: torch.randn(*s, dtype=torch.bfloat16) * 0.05)(D)),
        }
    _A_in = _A_setup()

    def _B_setup():
        B, S, Dm, Df = 1, 2048, 512, 1792
        return {
            "x": _w((lambda *s: torch.randn(*s, dtype=torch.bfloat16) * 0.05)(B, S, Dm)),
            "w_gate": _w((lambda *s: torch.randn(*s, dtype=torch.bfloat16) * 0.4)(Dm, Df) * (Dm ** -0.5)),
            "w_up": _w((lambda *s: torch.randn(*s, dtype=torch.bfloat16) * 0.4)(Dm, Df) * (Dm ** -0.5)),
            "w_down": _w((lambda *s: torch.randn(*s, dtype=torch.bfloat16) * 0.4)(Df, Dm) * (Df ** -0.5)),
        }
    _B_in = _B_setup()

    return {
        "A_u": _A_in["u"],
        "A_log_A_real": _A_in["log_A_real"],
        "A_A_imag": _A_in["A_imag"],
        "A_C_real": _A_in["C_real"],
        "A_C_imag": _A_in["C_imag"],
        "A_log_dt": _A_in["log_dt"],
        "A_D_skip": _A_in["D_skip"],
        "B_x": _B_in["x"],
        "B_w_gate": _B_in["w_gate"],
        "B_w_up": _B_in["w_up"],
        "B_w_down": _B_in["w_down"],
    }

def reference(A_u, A_log_A_real, A_A_imag, A_C_real, A_C_imag, A_log_dt, A_D_skip, B_x, B_w_gate, B_w_up, B_w_down):
    def _A_ref(u, log_A_real, A_imag, C_real, C_imag, log_dt, D_skip):
        L = u.shape[1]
        dt = torch.exp(log_dt)
        A = -torch.exp(log_A_real) + 1j * A_imag
        C = (C_real + 1j * C_imag) * dt[:, None]
        pos = (lambda x, dt: x.to(dt))(torch.arange(L), log_dt.dtype)
        P = torch.exp((A * dt[:, None])[:, :, None] * pos[None, None, :])
        K = 2.0 * torch.einsum("dn,dnl->dl", C, P).real
        L2 = 2 * L
        u_t = (lambda x, *d: x.permute(*d))(u, 0, 2, 1)
        Kf = (lambda x, *a, **k: torch.fft.rfft(x.float(), *a, **k))(K, L2)
        Uf = (lambda x, *a, **k: torch.fft.rfft(x.float(), *a, **k))(u_t, L2)
        y = (lambda x, *a, **k: torch.fft.irfft(x, *a, **k).to(torch.bfloat16))(Uf * Kf[None, :, :], L2)[:, :, :L]
        y = (lambda x, *d: x.permute(*d))(y, 0, 2, 1)
        return y + u * D_skip[None, None, :]

    def _B_ref(x, w_gate, w_up, w_down):
        g = torch.einsum("bsd,df->bsf", x, w_gate)
        u = torch.einsum("bsd,df->bsf", x, w_up)
        h = _gelu(g) * u
        return torch.einsum("bsf,fd->bsd", h, w_down)

    x = A_u
    h = x + _A_ref(_layernorm(x, axis=-1), A_log_A_real, A_A_imag, A_C_real, A_C_imag, A_log_dt, A_D_skip)
    h2 = h + _B_ref(_layernorm(h, axis=-1), B_w_gate, B_w_up, B_w_down)
    return h2
```

```python
import re

TRANS = ("v_exp_f32", "v_log_f32", "v_rcp_f32", "v_rsq_f32", "v_sqrt_f32", "v_sin_f32", "v_cos_f32",
         "v_exp_f16", "v_log_f16", "v_rcp_f16", "v_rsq_f16", "v_sqrt_f16", "v_sin_f16", "v_cos_f16", "v_rcp_iflag_f32")

def _regs(tok):
    tok = tok.strip()
    neg = tok.startswith("-")
    if neg: tok = tok[1:]
    m = re.match(r"abs\((.*)\)$", tok)
    if m: tok = m.group(1)
    m = re.match(r"\|(.*)\|$", tok)
    if m: tok = m.group(1)
    m = re.match(r"([vsa])\[(\d+):(\d+)\]$", tok)
    if m:
        return {f"{m.group(1)}{i}" for i in range(int(m.group(2)), int(m.group(3)) + 1)}
    m = re.match(r"([vsa])(\d+)$", tok)
    if m:
        return {tok}
    if tok in ("vcc", "vcc_lo", "vcc_hi"): return {"vcc"}
    if tok in ("exec", "exec_lo", "exec_hi"): return {"exec"}
    if tok == "m0": return {"m0"}
    return set()

class Ins:
    __slots__ = ("text", "op", "ops", "cls", "w", "r", "srcc", "passes", "dpp", "nop", "label", "target", "sdata", "lds")
    def __init__(self, text):
        self.text = text
        t = text.split(";")[0].strip()
        self.label = None; self.target = None; self.nop = 0
        self.w = set(); self.r = set(); self.srcc = set(); self.passes = 0; self.dpp = False; self.sdata = set(); self.lds = False
        if not t or t.startswith("."):
            self.cls = "none"; self.op = ""; self.ops = []; return
        if t.endswith(":"):
            self.cls = "label"; self.label = t[:-1]; self.op = ""; self.ops = []; return
        parts = t.split(None, 1)
        op = parts[0]; self.op = op
        rest = parts[1] if len(parts) > 1 else ""
        ops = []; cur = ""; depth = 0
        for ch in rest:
            if ch in "[(": depth += 1
            if ch in "])": depth -= 1
            if ch == "," and depth == 0:
                ops.append(cur.strip()); cur = ""
            else: cur += ch
        if cur.strip(): ops.append(cur.strip())
        mods = ""
        if ops:
            sp = ops[-1].split(None, 1)
            if len(sp) > 1:
                ops[-1] = sp[0]; mods = sp[1]
        self.ops = ops
        base = re.sub(r"_(e32|e64|dpp|sdwa)$", "", op)
        if op == "s_nop":
            self.cls = "nop"; self.nop = int(ops[0], 0) + 1; return
        if op.startswith("v_mfma"):
            self.cls = "mfma"
            self.w = _regs(ops[0]); self.r = _regs(ops[1]) | _regs(ops[2]); self.srcc = _regs(ops[3])
            self.passes = 8 if "32x32" in op else 4
            return
        if op.startswith("v_"):
            self.cls = "trans" if base in TRANS else "valu"
            self.dpp = ("dpp" in op) or any(k in mods for k in ("row_shr", "row_shl", "row_ror", "quad_perm", "row_bcast", "row_mirror", "row_half_mirror", "wave_", "row_newbcast"))
            if base.startswith("v_cmp"):
                self.w = _regs(ops[0]);
                for o in ops[1:]: self.r |= _regs(o)
                if base.startswith("v_cmpx"): self.w |= {"exec"}
            elif base in ("v_permlane32_swap_b32", "v_permlane16_swap_b32", "v_swap_b32"):
                self.w = _regs(ops[0]) | _regs(ops[1]); self.r = set(self.w)
            elif base in ("v_add_co_u32", "v_sub_co_u32", "v_subrev_co_u32", "v_addc_co_u32", "v_subb_co_u32", "v_subbrev_co_u32", "v_div_scale_f32", "v_mad_u64_u32"):
                self.w = _regs(ops[0]) | _regs(ops[1])
                for o in ops[2:]: self.r |= _regs(o)
            else:
                self.w = _regs(ops[0])
                for o in ops[1:]: self.r |= _regs(o)
                if base in ("v_fmac_f32", "v_dot2c_f32_bf16", "v_dot2c_f32_f16", "v_pk_fmac_f16", "v_writelane_b32", "v_fmac_f16") or self.dpp or "sdwa" in op:
                    self.r |= self.w
            return
        if op.startswith("buffer_") or op.startswith("global_") or op.startswith("flat_"):
            self.cls = "vmem"
            self.lds = bool(re.search(r"\blds\b", mods)) or "_lds_" in op
            if op in ("buffer_wbl2", "buffer_inv"): return
            if self.lds:
                for o in ops: self.r |= _regs(o)
                self.r |= {"m0"}
            elif "load" in op:
                self.w = _regs(ops[0])
                for o in ops[1:]: self.r |= _regs(o)
                if "d16" in op: self.r |= self.w
            else:
                for o in ops: self.r |= _regs(o)
                if op.startswith("buffer_"): d = _regs(ops[0])
                else: d = _regs(ops[1])
                if "x3" in op or "x4" in op: self.sdata = d
                if "atomic" in op and "sc0" in mods: self.w = _regs(ops[0])
            return
        if op.startswith("ds_"):
            self.cls = "ds"
            if "read" in op or "permute" in op or "swizzle" in op or ("rtn" in op):
                self.w = _regs(ops[0])
                for o in ops[1:]: self.r |= _regs(o)
                if "d16" in op: self.r |= self.w
            else:
                for o in ops: self.r |= _regs(o)
            return
        if op.startswith("s_"):
            self.cls = "salu"
            if op.startswith("s_cbranch") or op == "s_branch":
                self.cls = "branch"; self.target = ops[0]; return
            if op in ("s_waitcnt", "s_barrier", "s_endpgm", "s_sleep", "s_setprio") or op.startswith("s_cmp"):
                for o in ops: self.r |= _regs(o)
                return
            if ops:
                self.w = _regs(ops[0])
                for o in ops[1:]: self.r |= _regs(o)
                if "saveexec" in op: self.w |= {"exec"}
            return
        raise ValueError("unknown instruction: " + text)

def need(p, c):
    n = 0
    pv = p.cls in ("valu", "trans")
    cv = c.cls in ("valu", "trans")
    if pv:
        vw = {x for x in p.w if x[0] in "va" and x != "vcc"}
        sw = {x for x in p.w if x[0] == "s" or x == "vcc"}
        if c.cls == "mfma" and vw & (c.r | c.srcc): n = max(n, 2)
        if cv and c.dpp and vw & c.r: n = max(n, 2)
        if cv and c.op.startswith("v_permlane") and vw & c.r: n = max(n, 2)
        if cv and (c.op.startswith("v_readlane") or c.op.startswith("v_readfirstlane")) and vw & c.r: n = max(n, 1)
        if p.cls == "trans" and c.cls != "trans" and vw & c.r and c.cls in ("valu", "mfma", "vmem", "ds"): n = max(n, 1)
        if ("sdwa" in p.op or ("op_sel" in p.text and not p.op.startswith("v_pk_"))) and cv and vw & (c.r | c.w): n = max(n, 1)
        if sw:
            if cv and sw & c.r:
                n = max(n, 4 if (c.op.startswith("v_readlane") or c.op.startswith("v_writelane")) else 2)
            if c.cls == "vmem" and sw & c.r: n = max(n, 5)
            if c.cls == "salu" and sw & c.r: n = max(n, 1)
            if c.cls == "branch" and "vcc" in sw and "vcc" in c.op: n = max(n, 5)
        if "exec" in p.w:
            if c.cls == "mfma": n = max(n, 4)
            if cv and c.dpp: n = max(n, 5)
            if cv and (c.op.startswith("v_readlane") or c.op.startswith("v_readfirstlane") or c.op.startswith("v_permlane")): n = max(n, 4)
    if p.cls == "mfma":
        big = {4: 8, 8: 12}[p.passes]
        if c.cls == "mfma":
            if p.w & c.r: n = max(n, big)
            if p.w & c.srcc:
                if not (p.w == c.srcc and p.op == c.op): n = max(n, {4: 6, 8: 10}[p.passes])
            if p.w & c.w and not (p.w == c.w and p.w == c.srcc and p.op == c.op): n = max(n, {4: 6, 8: 10}[p.passes])
        elif c.cls in ("valu", "trans", "vmem", "ds"):
            if p.w & (c.r | c.w): n = max(n, big)
            if cv and p.srcc & c.w: n = max(n, {4: 3, 8: 7}[p.passes])
    if p.cls == "salu" and "m0" in p.w and c.cls == "vmem" and c.lds: n = max(n, 1)
    if p.cls == "vmem" and p.sdata:
        if cv and p.sdata & c.w: n = max(n, 2)
        elif c.cls in ("vmem", "ds", "mfma") and p.sdata & c.w: n = max(n, 1)
    return n

WINDOW = 20
def slots(i):
    if i.cls in ("none", "label"): return 0
    if i.cls == "nop": return i.nop
    return 1

def fix_hazards(lines):
    ins = [Ins(l) for l in lines]
    out = []
    def required(prev, c):
        dist = 0; miss = 0
        for p in reversed(prev):
            if dist >= WINDOW: break
            if p.cls not in ("none", "label", "nop"):
                nn = need(p, c)
                if nn > dist: miss = max(miss, nn - dist)
            dist += slots(p)
        return miss
    for c in ins:
        if c.cls not in ("none", "label", "nop"):
            miss = required(out[-4*WINDOW:], c)
            while miss > 0:
                k = min(miss, 16)
                out.append(Ins(f"    s_nop {k-1}")); miss -= k
        out.append(c)
    changed = True
    while changed:
        changed = False
        labels = {i.label: k for k, i in enumerate(out) if i.cls == "label"}
        for k, b in enumerate(out):
            if b.cls == "branch" and b.target in labels:
                tail = out[max(0, k-4*WINDOW):k+1]
                seq = list(tail)
                worst = 0
                d = 0
                for c in out[labels[b.target]:labels[b.target]+4*WINDOW]:
                    if d >= WINDOW: break
                    if c.cls not in ("none", "label", "nop"):
                        worst = max(worst, required(seq, c))
                    seq.append(c); d += slots(c)
                    if c.cls == "branch" and c.op == "s_branch": break
                if worst > 0:
                    out.insert(k, Ins(f"    s_nop {worst-1}"))
                    changed = True
                    break
    return [i.text for i in out]

class Asm:
    def __init__(self): self.l = []
    def __call__(self, s):
        for x in s.split("\n"):
            x = x.strip()
            if not x: continue
            if x.endswith(":") or x.startswith("."): self.l.append(x)
            else: self.l.append("    " + x)
    def text(self): return "\n".join(fix_hazards(self.l))

def kernel_desc(name, vgpr, sgpr=102, accum=None):
    if accum is None: accum = (vgpr + 3) // 4 * 4
    return f""".p2align 6
.amdhsa_kernel {name}
  .amdhsa_next_free_vgpr {vgpr}
  .amdhsa_next_free_sgpr {sgpr}
  .amdhsa_accum_offset {accum}
  .amdhsa_group_segment_fixed_size 0
  .amdhsa_kernarg_size 112
  .amdhsa_user_sgpr_count 2
  .amdhsa_user_sgpr_kernarg_segment_ptr 1
  .amdhsa_system_sgpr_workgroup_id_x 1
.end_amdhsa_kernel"""
```

```python
from asmlib import *
WS_STATS = 0x0000000
WS_CS    = 0x0010000
WS_WGU   = 0x0100000
WS_WD    = 0x0500000
WS_HP    = 0x0700000
WS_HM    = 0x0900000
WS_SIZE  = 0x1100000
WS_DBG = 0x1000000
import os
STAMPS = int(os.environ.get('STAMPS', '0'))
ST = "sc1"

def srd(A, d, ptr_s, size):
    A(f"s_mov_b32 s{d}, s{ptr_s}\ns_mov_b32 s{d+1}, s{ptr_s+1}\ns_mov_b32 s{d+2}, {size:#x}\ns_mov_b32 s{d+3}, 0x00020000")

def header(A, name):
    A(f".globl {name}\n.p2align 8\n.type {name},@function\n{name}:")

def allreduce_add(A, regs, tmps):
    for sh in (8, 4, 2, 1):
        for r in regs:
            A(f"v_add_f32_dpp v{r}, v{r}, v{r} row_ror:{sh} row_mask:0xf bank_mask:0xf")
    for sw in ("v_permlane16_swap_b32", "v_permlane32_swap_b32"):
        for r, t in zip(regs, tmps): A(f"v_mov_b32 v{t}, v{r}")
        for r, t in zip(regs, tmps): A(f"{sw} v{r}, v{t}")
        for r, t in zip(regs, tmps): A(f"v_add_f32 v{r}, v{r}, v{t}")

def allreduce_max(A, regs, tmps):
    for sh in (8, 4, 2, 1):
        for r in regs:
            A(f"v_max_f32_dpp v{r}, v{r}, v{r} row_ror:{sh} row_mask:0xf bank_mask:0xf")
    for sw in ("v_permlane16_swap_b32", "v_permlane32_swap_b32"):
        for r, t in zip(regs, tmps): A(f"v_mov_b32 v{t}, v{r}")
        for r, t in zip(regs, tmps): A(f"{sw} v{r}, v{t}")
        for r, t in zip(regs, tmps): A(f"v_max_f32 v{r}, v{r}, v{t}")

def rbf(A, dst, src):
    A(f"v_cvt_pk_bf16_f32 v{dst}, v{src}, v{src}")
    A(f"v_lshlrev_b32 v{dst}, 16, v{dst}")

class Stamper:
    def __init__(self, A, kidx): self.A = A; self.n = 0; self.k = kidx; self.names = []
    def __call__(self, name):
        if not STAMPS: return
        self.A(f"s_memtime s[{80+2*self.n}:{81+2*self.n}]"); self.n += 1; self.names.append(name)
        assert self.n <= 10
    def dump(self, wave_sgpr, srd=24, v=248):
        if not STAMPS: return
        A = self.A
        self("end")
        A("s_waitcnt lgkmcnt(0)")
        A(f"s_lshl_b32 s79, s2, 3\ns_add_u32 s79, s79, s{wave_sgpr}\ns_lshl_b32 s79, s79, 6\ns_add_u32 s79, s79, {WS_DBG + self.k*0x40000:#x}")
        A(f"v_mov_b32 v{v+1}, 0")
        for i in range(self.n):
            A(f"v_mov_b32 v{v}, s{80+2*i}")
            A(f"buffer_store_dword v{v}, v{v+1}, s[{srd}:{srd+3}], s79 offen offset:{4*i}")
        print("stamps k%d:" % self.k, self.names)
```

```python
import sys, importlib
from common import *
mods = sys.argv[2:] if len(sys.argv) > 2 else ["k1", "k2", "k3", "k4"]
out = sys.argv[1]
hdr = open("sequential_preLN__ssm_conv_s4d__glu_gated_geglu__prompt.s.ref").read().split("; Override launch")[0]
bodies = []; infos = []
for m in mods:
    mod = importlib.import_module(m)
    A = Asm()
    info = getattr(mod, "gen_" + m.split("_")[0])(A)
    bodies.append(A.text()); infos.append(info)
s = hdr
for i in infos:
    s += f"; @launch kernel={i['name']} grid=({i['grid']},1,1) block=({i['block']},1,1) lds={i['lds']}\n"
s += '.amdgcn_target "amdgcn-amd-amdhsa--gfx950"\n.text\n'
s += "\n".join(bodies) + "\nL_text_end:\n.fill 256, 4, 0xbf800000\ns_endpgm\n"
s += '.section .rodata,"a"\n'
for i in infos:
    s += kernel_desc(i["name"], i["vgpr"], i.get("sgpr", 102), i.get("accum")) + "\n"
open(out, "w").write(s)
```

```python
import re

TRANS = ("v_exp_f32", "v_log_f32", "v_rcp_f32", "v_rsq_f32", "v_sqrt_f32", "v_sin_f32", "v_cos_f32",
         "v_exp_f16", "v_log_f16", "v_rcp_f16", "v_rsq_f16", "v_sqrt_f16", "v_sin_f16", "v_cos_f16", "v_rcp_iflag_f32")

def _regs(tok):
    tok = tok.strip()
    neg = tok.startswith("-")
    if neg: tok = tok[1:]
    m = re.match(r"abs\((.*)\)$", tok)
    if m: tok = m.group(1)
    m = re.match(r"\|(.*)\|$", tok)
    if m: tok = m.group(1)
    m = re.match(r"([vsa])\[(\d+):(\d+)\]$", tok)
    if m:
        return {f"{m.group(1)}{i}" for i in range(int(m.group(2)), int(m.group(3)) + 1)}
    m = re.match(r"([vsa])(\d+)$", tok)
    if m:
        return {tok}
    if tok in ("vcc", "vcc_lo", "vcc_hi"): return {"vcc"}
    if tok in ("exec", "exec_lo", "exec_hi"): return {"exec"}
    if tok == "m0": return {"m0"}
    return set()

class Ins:
    __slots__ = ("text", "op", "ops", "cls", "w", "r", "srcc", "passes", "dpp", "nop", "label", "target", "sdata", "lds")
    def __init__(self, text):
        self.text = text
        t = text.split(";")[0].strip()
        self.label = None; self.target = None; self.nop = 0
        self.w = set(); self.r = set(); self.srcc = set(); self.passes = 0; self.dpp = False; self.sdata = set(); self.lds = False
        if not t or t.startswith("."):
            self.cls = "none"; self.op = ""; self.ops = []; return
        if t.endswith(":"):
            self.cls = "label"; self.label = t[:-1]; self.op = ""; self.ops = []; return
        parts = t.split(None, 1)
        op = parts[0]; self.op = op
        rest = parts[1] if len(parts) > 1 else ""
        ops = []; cur = ""; depth = 0
        for ch in rest:
            if ch in "[(": depth += 1
            if ch in "])": depth -= 1
            if ch == "," and depth == 0:
                ops.append(cur.strip()); cur = ""
            else: cur += ch
        if cur.strip(): ops.append(cur.strip())
        mods = ""
        if ops:
            sp = ops[-1].split(None, 1)
            if len(sp) > 1:
                ops[-1] = sp[0]; mods = sp[1]
        self.ops = ops
        base = re.sub(r"_(e32|e64|dpp|sdwa)$", "", op)
        if op == "s_nop":
            self.cls = "nop"; self.nop = int(ops[0], 0) + 1; return
        if op.startswith("v_mfma"):
            self.cls = "mfma"
            self.w = _regs(ops[0]); self.r = _regs(ops[1]) | _regs(ops[2]); self.srcc = _regs(ops[3])
            self.passes = 8 if "32x32" in op else 4
            return
        if op.startswith("v_"):
            self.cls = "trans" if base in TRANS else "valu"
            self.dpp = ("dpp" in op) or any(k in mods for k in ("row_shr", "row_shl", "row_ror", "quad_perm", "row_bcast", "row_mirror", "row_half_mirror", "wave_", "row_newbcast"))
            if base.startswith("v_cmp"):
                self.w = _regs(ops[0]);
                for o in ops[1:]: self.r |= _regs(o)
                if base.startswith("v_cmpx"): self.w |= {"exec"}
            elif base in ("v_permlane32_swap_b32", "v_permlane16_swap_b32", "v_swap_b32"):
                self.w = _regs(ops[0]) | _regs(ops[1]); self.r = set(self.w)
            elif base in ("v_add_co_u32", "v_sub_co_u32", "v_subrev_co_u32", "v_addc_co_u32", "v_subb_co_u32", "v_subbrev_co_u32", "v_div_scale_f32", "v_mad_u64_u32"):
                self.w = _regs(ops[0]) | _regs(ops[1])
                for o in ops[2:]: self.r |= _regs(o)
            else:
                self.w = _regs(ops[0])
                for o in ops[1:]: self.r |= _regs(o)
                if base in ("v_fmac_f32", "v_dot2c_f32_bf16", "v_dot2c_f32_f16", "v_pk_fmac_f16", "v_writelane_b32", "v_fmac_f16") or self.dpp or "sdwa" in op:
                    self.r |= self.w
            return
        if op.startswith("buffer_") or op.startswith("global_") or op.startswith("flat_"):
            self.cls = "vmem"
            self.lds = bool(re.search(r"\blds\b", mods)) or "_lds_" in op
            if op in ("buffer_wbl2", "buffer_inv"): return
            if self.lds:
                for o in ops: self.r |= _regs(o)
                self.r |= {"m0"}
            elif "load" in op:
                self.w = _regs(ops[0])
                for o in ops[1:]: self.r |= _regs(o)
                if "d16" in op: self.r |= self.w
            else:
                for o in ops: self.r |= _regs(o)
                if op.startswith("buffer_"): d = _regs(ops[0])
                else: d = _regs(ops[1])
                if "x3" in op or "x4" in op: self.sdata = d
                if "atomic" in op and "sc0" in mods: self.w = _regs(ops[0])
            return
        if op.startswith("ds_"):
            self.cls = "ds"
            if "read" in op or "permute" in op or "swizzle" in op or ("rtn" in op):
                self.w = _regs(ops[0])
                for o in ops[1:]: self.r |= _regs(o)
                if "d16" in op: self.r |= self.w
            else:
                for o in ops: self.r |= _regs(o)
            return
        if op.startswith("s_"):
            self.cls = "salu"
            if op.startswith("s_cbranch") or op == "s_branch":
                self.cls = "branch"; self.target = ops[0]; return
            if op in ("s_waitcnt", "s_barrier", "s_endpgm", "s_sleep", "s_setprio") or op.startswith("s_cmp"):
                for o in ops: self.r |= _regs(o)
                return
            if ops:
                self.w = _regs(ops[0])
                for o in ops[1:]: self.r |= _regs(o)
                if "saveexec" in op: self.w |= {"exec"}
            return
        raise ValueError("unknown instruction: " + text)

def need(p, c):
    n = 0
    pv = p.cls in ("valu", "trans")
    cv = c.cls in ("valu", "trans")
    if pv:
        vw = {x for x in p.w if x[0] in "va" and x != "vcc"}
        sw = {x for x in p.w if x[0] == "s" or x == "vcc"}
        if c.cls == "mfma" and vw & (c.r | c.srcc): n = max(n, 2)
        if cv and c.dpp and vw & c.r: n = max(n, 2)
        if cv and c.op.startswith("v_permlane") and vw & c.r: n = max(n, 2)
        if cv and (c.op.startswith("v_readlane") or c.op.startswith("v_readfirstlane")) and vw & c.r: n = max(n, 1)
        if p.op.startswith("v_dot"):
            if c.op == p.op:
                ab = set()
                for o in c.ops[1:3]: ab |= _regs(o)
                if vw & ab: n = max(n, 3)
            elif vw & (c.r | c.w | c.srcc): n = max(n, 3)
        if p.cls == "trans" and c.cls != "trans" and vw & c.r and c.cls in ("valu", "mfma", "vmem", "ds"): n = max(n, 1)
        if ("sdwa" in p.op or ("op_sel" in p.text and not p.op.startswith("v_pk_"))) and cv and vw & (c.r | c.w): n = max(n, 1)
        if sw:
            if cv and sw & c.r:
                n = max(n, 4 if (c.op.startswith("v_readlane") or c.op.startswith("v_writelane")) else 2)
            if c.cls == "vmem" and sw & c.r: n = max(n, 5)
            if c.cls == "salu" and sw & c.r: n = max(n, 1)
            if c.cls == "branch" and "vcc" in sw and "vcc" in c.op: n = max(n, 5)
        if "exec" in p.w:
            if c.cls == "mfma": n = max(n, 4)
            if cv and c.dpp: n = max(n, 5)
            if cv and (c.op.startswith("v_readlane") or c.op.startswith("v_readfirstlane") or c.op.startswith("v_permlane")): n = max(n, 4)
    if p.cls == "mfma":
        big = {4: 8, 8: 12}[p.passes]
        if c.cls == "mfma":
            if p.w & c.r: n = max(n, big)
            if p.w & c.srcc:
                if not (p.w == c.srcc and p.op == c.op): n = max(n, {4: 6, 8: 10}[p.passes])
            if p.w & c.w and not (p.w == c.w and p.w == c.srcc and p.op == c.op): n = max(n, {4: 6, 8: 10}[p.passes])
        elif c.cls in ("valu", "trans", "vmem", "ds"):
            if p.w & (c.r | c.w): n = max(n, big)
            if cv and p.srcc & c.w: n = max(n, {4: 3, 8: 7}[p.passes])
    if p.cls == "salu" and "m0" in p.w and c.cls == "vmem" and c.lds: n = max(n, 1)
    if p.cls == "vmem" and p.sdata:
        if cv and p.sdata & c.w: n = max(n, 2)
        elif c.cls in ("vmem", "ds", "mfma") and p.sdata & c.w: n = max(n, 1)
    return n

WINDOW = 20
def slots(i):
    if i.cls in ("none", "label"): return 0
    if i.cls == "nop": return i.nop
    return 1

def fix_hazards(lines):
    ins = [Ins(l) for l in lines]
    out = []
    def required(prev, c):
        dist = 0; miss = 0
        for p in reversed(prev):
            if dist >= WINDOW: break
            if p.cls not in ("none", "label", "nop"):
                nn = need(p, c)
                if nn > dist: miss = max(miss, nn - dist)
            dist += slots(p)
        return miss
    for c in ins:
        if c.cls not in ("none", "label", "nop"):
            miss = required(out[-4*WINDOW:], c)
            while miss > 0:
                k = min(miss, 16)
                out.append(Ins(f"    s_nop {k-1}")); miss -= k
        out.append(c)
    changed = True
    while changed:
        changed = False
        labels = {i.label: k for k, i in enumerate(out) if i.cls == "label"}
        for k, b in enumerate(out):
            if b.cls == "branch" and b.target in labels:
                tail = out[max(0, k-4*WINDOW):k+1]
                seq = list(tail)
                worst = 0
                d = 0
                for c in out[labels[b.target]:labels[b.target]+4*WINDOW]:
                    if d >= WINDOW: break
                    if c.cls not in ("none", "label", "nop"):
                        worst = max(worst, required(seq, c))
                    seq.append(c); d += slots(c)
                    if c.cls == "branch" and c.op == "s_branch": break
                if worst > 0:
                    out.insert(k, Ins(f"    s_nop {worst-1}"))
                    changed = True
                    break
    return [i.text for i in out]

class Asm:
    def __init__(self): self.l = []
    def __call__(self, s):
        for x in s.split("\n"):
            x = x.strip()
            if not x: continue
            if x.endswith(":") or x.startswith("."): self.l.append(x)
            else: self.l.append("    " + x)
    def text(self): return "\n".join(fix_hazards(self.l))

def kernel_desc(name, vgpr, sgpr=102, accum=None):
    if accum is None: accum = (vgpr + 3) // 4 * 4
    return f""".p2align 6
.amdhsa_kernel {name}
  .amdhsa_next_free_vgpr {vgpr}
  .amdhsa_next_free_sgpr {sgpr}
  .amdhsa_accum_offset {accum}
  .amdhsa_group_segment_fixed_size 0
  .amdhsa_kernarg_size 112
  .amdhsa_user_sgpr_count 2
  .amdhsa_user_sgpr_kernarg_segment_ptr 1
  .amdhsa_system_sgpr_workgroup_id_x 1
.end_amdhsa_kernel"""
```

```python
from asmlib import *
WS_STATS = 0x0000000
WS_CS    = 0x0010000
WS_WGU   = 0x0100000
WS_WD    = 0x0500000
WS_HT    = 0x0700000
WS_HP    = 0x0700000
WS_HM    = 0x0900000
WS_XP    = 0x1000000
WS_KRG   = 0x1200000
KRG_ROW  = 4160
WS_SCALE = 0x0008000
WS_FLAG  = 0x0004000
WS_CSF   = 0x0009000
WS_DBG   = 0x1500000
WS_SIZE  = 0x1700000
import os
STAMPS = int(os.environ.get('STAMPS', '0'))
ST = "sc1"

def srd(A, d, ptr_s, size):
    A(f"s_mov_b32 s{d}, s{ptr_s}\ns_mov_b32 s{d+1}, s{ptr_s+1}\ns_mov_b32 s{d+2}, {size:#x}\ns_mov_b32 s{d+3}, 0x00020000")

def header(A, name):
    A(f".globl {name}\n.p2align 8\n.type {name},@function\n{name}:")

def allreduce_add(A, regs, tmps):
    for sh in (8, 4, 2, 1):
        for r in regs:
            A(f"v_add_f32_dpp v{r}, v{r}, v{r} row_ror:{sh} row_mask:0xf bank_mask:0xf")
    for sw in ("v_permlane16_swap_b32", "v_permlane32_swap_b32"):
        for r, t in zip(regs, tmps): A(f"v_mov_b32 v{t}, v{r}")
        for r, t in zip(regs, tmps): A(f"{sw} v{r}, v{t}")
        for r, t in zip(regs, tmps): A(f"v_add_f32 v{r}, v{r}, v{t}")

def allreduce_max(A, regs, tmps):
    for sh in (8, 4, 2, 1):
        for r in regs:
            A(f"v_max_f32_dpp v{r}, v{r}, v{r} row_ror:{sh} row_mask:0xf bank_mask:0xf")
    for sw in ("v_permlane16_swap_b32", "v_permlane32_swap_b32"):
        for r, t in zip(regs, tmps): A(f"v_mov_b32 v{t}, v{r}")
        for r, t in zip(regs, tmps): A(f"{sw} v{r}, v{t}")
        for r, t in zip(regs, tmps): A(f"v_max_f32 v{r}, v{r}, v{t}")

def rbf(A, dst, src):
    A(f"v_cvt_pk_bf16_f32 v{dst}, v{src}, v{src}")
    A(f"v_lshlrev_b32 v{dst}, 16, v{dst}")

class Stamper:
    def __init__(self, A, kidx): self.A = A; self.n = 0; self.k = kidx; self.names = []
    def __call__(self, name):
        if not STAMPS: return
        self.A(f"s_memtime s[{80+2*self.n}:{81+2*self.n}]"); self.n += 1; self.names.append(name)
        assert self.n <= 10
    def dump(self, wave_sgpr, srd=24, v=248):
        if not STAMPS: return
        A = self.A
        self("end")
        A("s_waitcnt lgkmcnt(0)")
        A(f"s_lshl_b32 s79, s2, 3\ns_add_u32 s79, s79, s{wave_sgpr}\ns_lshl_b32 s79, s79, 6\ns_add_u32 s79, s79, {WS_DBG + self.k*0x40000:#x}")
        A(f"v_mov_b32 v{v+1}, 0")
        for i in range(self.n):
            A(f"v_mov_b32 v{v}, s{80+2*i}")
            A(f"buffer_store_dword v{v}, v{v+1}, s[{srd}:{srd+3}], s79 offen offset:{4*i}")
        print("stamps k%d:" % self.k, self.names)
```

```python
import re

TRANS = ("v_exp_f32", "v_log_f32", "v_rcp_f32", "v_rsq_f32", "v_sqrt_f32", "v_sin_f32", "v_cos_f32",
         "v_exp_f16", "v_log_f16", "v_rcp_f16", "v_rsq_f16", "v_sqrt_f16", "v_sin_f16", "v_cos_f16", "v_rcp_iflag_f32")

def _regs(tok):
    tok = tok.strip()
    neg = tok.startswith("-")
    if neg: tok = tok[1:]
    m = re.match(r"abs\((.*)\)$", tok)
    if m: tok = m.group(1)
    m = re.match(r"\|(.*)\|$", tok)
    if m: tok = m.group(1)
    m = re.match(r"([vsa])\[(\d+):(\d+)\]$", tok)
    if m:
        return {f"{m.group(1)}{i}" for i in range(int(m.group(2)), int(m.group(3)) + 1)}
    m = re.match(r"([vsa])(\d+)$", tok)
    if m:
        return {tok}
    if tok in ("vcc", "vcc_lo", "vcc_hi"): return {"vcc"}
    if tok in ("exec", "exec_lo", "exec_hi"): return {"exec"}
    if tok == "m0": return {"m0"}
    return set()

class Ins:
    __slots__ = ("text", "op", "ops", "cls", "w", "r", "srcc", "passes", "dpp", "nop", "label", "target", "sdata", "lds")
    def __init__(self, text):
        self.text = text
        t = text.split(";")[0].strip()
        self.label = None; self.target = None; self.nop = 0
        self.w = set(); self.r = set(); self.srcc = set(); self.passes = 0; self.dpp = False; self.sdata = set(); self.lds = False
        if not t or t.startswith("."):
            self.cls = "none"; self.op = ""; self.ops = []; return
        if t.endswith(":"):
            self.cls = "label"; self.label = t[:-1]; self.op = ""; self.ops = []; return
        parts = t.split(None, 1)
        op = parts[0]; self.op = op
        rest = parts[1] if len(parts) > 1 else ""
        ops = []; cur = ""; depth = 0
        for ch in rest:
            if ch in "[(": depth += 1
            if ch in "])": depth -= 1
            if ch == "," and depth == 0:
                ops.append(cur.strip()); cur = ""
            else: cur += ch
        if cur.strip(): ops.append(cur.strip())
        mods = ""
        if ops:
            sp = ops[-1].split(None, 1)
            if len(sp) > 1:
                ops[-1] = sp[0]; mods = sp[1]
        self.ops = ops
        base = re.sub(r"_(e32|e64|dpp|sdwa)$", "", op)
        if op == "s_nop":
            self.cls = "nop"; self.nop = int(ops[0], 0) + 1; return
        if op.startswith("v_mfma"):
            self.cls = "mfma"
            self.w = _regs(ops[0]); self.r = _regs(ops[1]) | _regs(ops[2]); self.srcc = _regs(ops[3])
            self.passes = 8 if "32x32" in op else (2 if "4x4x4" in op else 4)
            return
        if op.startswith("v_"):
            self.cls = "trans" if base in TRANS else "valu"
            self.dpp = ("dpp" in op) or any(k in mods for k in ("row_shr", "row_shl", "row_ror", "quad_perm", "row_bcast", "row_mirror", "row_half_mirror", "wave_", "row_newbcast"))
            if base.startswith("v_cmp"):
                self.w = _regs(ops[0]);
                for o in ops[1:]: self.r |= _regs(o)
                if base.startswith("v_cmpx"): self.w |= {"exec"}
            elif base in ("v_permlane32_swap_b32", "v_permlane16_swap_b32", "v_swap_b32"):
                self.w = _regs(ops[0]) | _regs(ops[1]); self.r = set(self.w)
            elif base in ("v_add_co_u32", "v_sub_co_u32", "v_subrev_co_u32", "v_addc_co_u32", "v_subb_co_u32", "v_subbrev_co_u32", "v_div_scale_f32", "v_mad_u64_u32"):
                self.w = _regs(ops[0]) | _regs(ops[1])
                for o in ops[2:]: self.r |= _regs(o)
            else:
                self.w = _regs(ops[0])
                for o in ops[1:]: self.r |= _regs(o)
                if base in ("v_fmac_f32", "v_dot2c_f32_bf16", "v_dot2c_f32_f16", "v_pk_fmac_f16", "v_writelane_b32", "v_fmac_f16") or self.dpp or "sdwa" in op:
                    self.r |= self.w
            return
        if op.startswith("buffer_") or op.startswith("global_") or op.startswith("flat_"):
            self.cls = "vmem"
            self.lds = bool(re.search(r"\blds\b", mods)) or "_lds_" in op
            if op in ("buffer_wbl2", "buffer_inv"): return
            if self.lds:
                for o in ops: self.r |= _regs(o)
                self.r |= {"m0"}
            elif "load" in op:
                self.w = _regs(ops[0])
                for o in ops[1:]: self.r |= _regs(o)
                if "d16" in op: self.r |= self.w
            else:
                for o in ops: self.r |= _regs(o)
                if op.startswith("buffer_"): d = _regs(ops[0])
                else: d = _regs(ops[1])
                if "x3" in op or "x4" in op: self.sdata = d
                if "atomic" in op and "sc0" in mods: self.w = _regs(ops[0])
            return
        if op.startswith("ds_"):
            self.cls = "ds"
            if "read" in op or "permute" in op or "swizzle" in op or ("rtn" in op):
                self.w = _regs(ops[0])
                for o in ops[1:]: self.r |= _regs(o)
                if "d16" in op: self.r |= self.w
            else:
                for o in ops: self.r |= _regs(o)
            return
        if op.startswith("s_"):
            self.cls = "salu"
            if op.startswith("s_cbranch") or op == "s_branch":
                self.cls = "branch"; self.target = ops[0]; return
            if op in ("s_waitcnt", "s_barrier", "s_endpgm", "s_sleep", "s_setprio") or op.startswith("s_cmp"):
                for o in ops: self.r |= _regs(o)
                return
            if ops:
                self.w = _regs(ops[0])
                for o in ops[1:]: self.r |= _regs(o)
                if "saveexec" in op: self.w |= {"exec"}
            return
        raise ValueError("unknown instruction: " + text)

def need(p, c):
    n = 0
    pv = p.cls in ("valu", "trans")
    cv = c.cls in ("valu", "trans")
    if pv:
        vw = {x for x in p.w if x[0] in "va" and x != "vcc"}
        sw = {x for x in p.w if x[0] == "s" or x == "vcc"}
        if c.cls == "mfma" and vw & (c.r | c.srcc): n = max(n, 2)
        if cv and c.dpp and vw & c.r: n = max(n, 2)
        if cv and c.op.startswith("v_permlane") and vw & c.r: n = max(n, 2)
        if cv and (c.op.startswith("v_readlane") or c.op.startswith("v_readfirstlane")) and vw & c.r: n = max(n, 1)
        if p.op.startswith("v_dot"):
            if c.op == p.op:
                ab = set()
                for o in c.ops[1:3]: ab |= _regs(o)
                if vw & ab: n = max(n, 3)
            elif vw & (c.r | c.w | c.srcc): n = max(n, 3)
        if p.cls == "trans" and c.cls != "trans" and vw & c.r and c.cls in ("valu", "mfma", "vmem", "ds"): n = max(n, 1)
        if ("sdwa" in p.op or ("op_sel" in p.text and not p.op.startswith("v_pk_"))) and cv and vw & (c.r | c.w): n = max(n, 1)
        if sw:
            if cv and sw & c.r:
                n = max(n, 4 if (c.op.startswith("v_readlane") or c.op.startswith("v_writelane")) else 2)
            if c.cls == "vmem" and sw & c.r: n = max(n, 5)
            if c.cls == "salu" and sw & c.r: n = max(n, 1)
            if c.cls == "branch" and "vcc" in sw and "vcc" in c.op: n = max(n, 5)
        if "exec" in p.w:
            if c.cls == "mfma": n = max(n, 4)
            if cv and c.dpp: n = max(n, 5)
            if cv and (c.op.startswith("v_readlane") or c.op.startswith("v_readfirstlane") or c.op.startswith("v_permlane")): n = max(n, 4)
    if p.cls == "mfma":
        big = {2: 5, 4: 8, 8: 12}[p.passes]
        if c.cls == "mfma":
            if p.w & c.r: n = max(n, big)
            if p.w & c.srcc:
                if not (p.w == c.srcc and p.op == c.op): n = max(n, {2: 4, 4: 6, 8: 10}[p.passes])
                elif p.passes == 2: n = max(n, 2)
            if p.w & c.w and not (p.w == c.w and p.w == c.srcc and p.op == c.op): n = max(n, {2: 4, 4: 6, 8: 10}[p.passes])
        elif c.cls in ("valu", "trans", "vmem", "ds"):
            if p.w & (c.r | c.w): n = max(n, big)
            if cv and p.srcc & c.w: n = max(n, {2: 1, 4: 3, 8: 7}[p.passes])
    if p.cls == "salu" and "m0" in p.w and c.cls == "vmem" and c.lds: n = max(n, 1)
    if p.cls == "vmem" and p.sdata:
        if cv and p.sdata & c.w: n = max(n, 2)
        elif c.cls in ("vmem", "ds", "mfma") and p.sdata & c.w: n = max(n, 1)
    return n

WINDOW = 20
def slots(i):
    if i.cls in ("none", "label"): return 0
    if i.cls == "nop": return i.nop
    return 1

def fix_hazards(lines):
    ins = [Ins(l) for l in lines]
    out = []
    def required(prev, c):
        dist = 0; miss = 0
        for p in reversed(prev):
            if dist >= WINDOW: break
            if p.cls not in ("none", "label", "nop"):
                nn = need(p, c)
                if nn > dist: miss = max(miss, nn - dist)
            dist += slots(p)
        return miss
    for c in ins:
        if c.cls not in ("none", "label", "nop"):
            miss = required(out[-4*WINDOW:], c)
            while miss > 0:
                k = min(miss, 16)
                out.append(Ins(f"    s_nop {k-1}")); miss -= k
        out.append(c)
    changed = True
    while changed:
        changed = False
        labels = {i.label: k for k, i in enumerate(out) if i.cls == "label"}
        for k, b in enumerate(out):
            if b.cls == "branch" and b.target in labels:
                tail = out[max(0, k-4*WINDOW):k+1]
                seq = list(tail)
                worst = 0
                d = 0
                for c in out[labels[b.target]:labels[b.target]+4*WINDOW]:
                    if d >= WINDOW: break
                    if c.cls not in ("none", "label", "nop"):
                        worst = max(worst, required(seq, c))
                    seq.append(c); d += slots(c)
                    if c.cls == "branch" and c.op == "s_branch": break
                if worst > 0:
                    out.insert(k, Ins(f"    s_nop {worst-1}"))
                    changed = True
                    break
    return [i.text for i in out]

class Asm:
    def __init__(self): self.l = []
    def __call__(self, s):
        for x in s.split("\n"):
            x = x.strip()
            if not x: continue
            if x.endswith(":") or x.startswith("."): self.l.append(x)
            else: self.l.append("    " + x)
    def text(self): return "\n".join(fix_hazards(self.l))

def kernel_desc(name, vgpr, sgpr=102, accum=None):
    if accum is None: accum = (vgpr + 3) // 4 * 4
    return f""".p2align 6
.amdhsa_kernel {name}
  .amdhsa_next_free_vgpr {vgpr}
  .amdhsa_next_free_sgpr {sgpr}
  .amdhsa_accum_offset {accum}
  .amdhsa_group_segment_fixed_size 0
  .amdhsa_kernarg_size 112
  .amdhsa_user_sgpr_count 2
  .amdhsa_user_sgpr_kernarg_segment_ptr 1
  .amdhsa_system_sgpr_workgroup_id_x 1
.end_amdhsa_kernel"""
```

```python
from asmlib import *
WS_STATS = 0x0000000
WS_CS    = 0x0010000
WS_PART  = 0x0080000
WS_WGU   = 0x0100000
WS_WD    = 0x0500000
WS_HT    = 0x0700000
WS_HP    = 0x0700000
WS_HM    = 0x0900000
WS_XP    = 0x1000000
WS_KRG   = 0x1200000
KRG_ROW  = 4160
WS_SCALE = 0x0008000
WS_FLAG  = 0x0004000
WS_CSF   = 0x0009000
WS_DBG   = 0x1500000
WS_SIZE  = 0x1700000
import os
STAMPS = int(os.environ.get('STAMPS', '0'))
ST = "sc1"

WSB = int(os.environ.get("WSB", "0"), 0)
def srd(A, d, ptr_s, size):
    if ptr_s == 38 and WSB:
        A(f"s_add_u32 s38, s38, {WSB:#x}\ns_addc_u32 s39, s39, 0")
    A(f"s_mov_b32 s{d}, s{ptr_s}\ns_mov_b32 s{d+1}, s{ptr_s+1}\ns_mov_b32 s{d+2}, {size:#x}\ns_mov_b32 s{d+3}, 0x00020000")

def header(A, name):
    A(f".globl {name}\n.p2align 8\n.type {name},@function\n{name}:")

def allreduce_add(A, regs, tmps):
    for sh in (8, 4, 2, 1):
        for r in regs:
            A(f"v_add_f32_dpp v{r}, v{r}, v{r} row_ror:{sh} row_mask:0xf bank_mask:0xf")
    for sw in ("v_permlane16_swap_b32", "v_permlane32_swap_b32"):
        for r, t in zip(regs, tmps): A(f"v_mov_b32 v{t}, v{r}")
        for r, t in zip(regs, tmps): A(f"{sw} v{r}, v{t}")
        for r, t in zip(regs, tmps): A(f"v_add_f32 v{r}, v{r}, v{t}")

def allreduce_max(A, regs, tmps):
    for sh in (8, 4, 2, 1):
        for r in regs:
            A(f"v_max_f32_dpp v{r}, v{r}, v{r} row_ror:{sh} row_mask:0xf bank_mask:0xf")
    for sw in ("v_permlane16_swap_b32", "v_permlane32_swap_b32"):
        for r, t in zip(regs, tmps): A(f"v_mov_b32 v{t}, v{r}")
        for r, t in zip(regs, tmps): A(f"{sw} v{r}, v{t}")
        for r, t in zip(regs, tmps): A(f"v_max_f32 v{r}, v{r}, v{t}")

def rbf(A, dst, src):
    A(f"v_cvt_pk_bf16_f32 v{dst}, v{src}, v{src}")
    A(f"v_lshlrev_b32 v{dst}, 16, v{dst}")

class Stamper:
    def __init__(self, A, kidx): self.A = A; self.n = 0; self.k = kidx; self.names = []
    def __call__(self, name):
        if not STAMPS: return
        self.A(f"s_memtime s[{80+2*self.n}:{81+2*self.n}]"); self.n += 1; self.names.append(name)
        assert self.n <= 10
    def dump(self, wave_sgpr, srd=24, v=248):
        if not STAMPS: return
        A = self.A
        self("end")
        A("s_waitcnt lgkmcnt(0)")
        A(f"s_lshl_b32 s79, s2, 3\ns_add_u32 s79, s79, s{wave_sgpr}\ns_lshl_b32 s79, s79, 6\ns_add_u32 s79, s79, {WS_DBG + self.k*0x40000:#x}")
        A(f"v_mov_b32 v{v+1}, 0")
        for i in range(self.n):
            A(f"v_mov_b32 v{v}, s{80+2*i}")
            A(f"buffer_store_dword v{v}, v{v+1}, s[{srd}:{srd+3}], s79 offen offset:{4*i}")
        print("stamps k%d:" % self.k, self.names)
```
